```python
import torch

def _softmax(x, axis=-1):
    return torch.softmax(x, dim=axis)
def _gelu(x):
    return torch.nn.functional.gelu(x, approximate="tanh")
def _silu(x):
    return torch.nn.functional.silu(x)
def _sigmoid(x):
    return torch.sigmoid(x)
def _layernorm(x, axis=-1, eps=1e-5):
    m = x.mean(dim=axis, keepdim=True)
    v = x.var(dim=axis, keepdim=True, unbiased=False)
    return (x - m) / torch.sqrt(v + eps)
def _scatter_add(tgt, idx, src, axis=0):
    return tgt.clone().index_add_(axis, idx, src)
def _segment_sum(src, seg, n):
    out = torch.zeros((n,) + src.shape[1:], dtype=src.dtype)
    return out.index_add_(0, seg, src)
def _pad(x, pw):
    flat = tuple(v for pair in reversed(pw) for v in pair)
    return torch.nn.functional.pad(x, flat)

kernel_name = 'concat_heads__gqa_block_cached__sliding_block_cached__decode'

def setup_inputs():

    _w = (lambda a: (lambda t: t.to(torch.bfloat16) if t.is_floating_point() else t)(torch.as_tensor(a)))
    def _A_setup():
        B, Sq, D = 2, 1, 512
        Hq, Hkv, Sk, Dh = 32, 8, 8192, 128
        assert Hq % Hkv == 0, (Hq, Hkv)
        return {
            "x": _w((lambda *s: torch.randn(*s, dtype=torch.bfloat16) * 0.8)(B, Sq, D)),
            "k_cache": _w((lambda *s: torch.randn(*s, dtype=torch.bfloat16) * 1.6)(B, Hkv, Sk, Dh)),
            "v_cache": _w((lambda *s: torch.randn(*s, dtype=torch.bfloat16) * 0.2)(B, Hkv, Sk, Dh)),
            "wq": _w((lambda *s: torch.randn(*s, dtype=torch.bfloat16) * 1.6)(D, Hq * Dh) * (D ** -0.5)),
            "wo": _w((lambda *s: torch.randn(*s, dtype=torch.bfloat16) * 0.2)(Hq * Dh, D) * ((Hq * Dh) ** -0.5)),
        }
    _A_in = _A_setup()

    def _B_setup():
        B, Sq, D = 2, 1, 512
        Hq, Hkv, Sk, Dh = 32, 8, 8192, 128
        assert Hq % Hkv == 0, (Hq, Hkv)
        return {
            "x": _w((lambda *s: torch.randn(*s, dtype=torch.bfloat16) * 0.8)(B, Sq, D)),
            "k_cache": _w((lambda *s: torch.randn(*s, dtype=torch.bfloat16) * 1.6)(B, Hkv, Sk, Dh)),
            "v_cache": _w((lambda *s: torch.randn(*s, dtype=torch.bfloat16) * 0.2)(B, Hkv, Sk, Dh)),
            "wq": _w((lambda *s: torch.randn(*s, dtype=torch.bfloat16) * 1.6)(D, Hq * Dh) * (D ** -0.5)),
            "wo": _w((lambda *s: torch.randn(*s, dtype=torch.bfloat16) * 0.2)(Hq * Dh, D) * ((Hq * Dh) ** -0.5)),
        }
    _B_in = _B_setup()

    return {
        "A_x": _A_in["x"],
        "A_k_cache": _A_in["k_cache"],
        "A_v_cache": _A_in["v_cache"],
        "A_wq": _A_in["wq"],
        "A_wo": _A_in["wo"],
        "B_x": _B_in["x"],
        "B_k_cache": _B_in["k_cache"],
        "B_v_cache": _B_in["v_cache"],
        "B_wq": _B_in["wq"],
        "B_wo": _B_in["wo"],
    }

def reference(A_x, A_k_cache, A_v_cache, A_wq, A_wo, B_x, B_k_cache, B_v_cache, B_wq, B_wo):
    def _A_ref(x, k_cache, v_cache, wq, wo):
        B, Sq, D = x.shape
        Hq, Dh = 32, 128
        Hkv = k_cache.shape[1]
        rep = Hq // Hkv
        q = (lambda x, *d: x.permute(*d))((x @ wq).reshape(B, Sq, Hq, Dh), 0, 2, 1, 3)
        k = (lambda x, n, axis: torch.repeat_interleave(x, n, dim=axis))(k_cache, rep, axis=1)
        v = (lambda x, n, axis: torch.repeat_interleave(x, n, dim=axis))(v_cache, rep, axis=1)
        scores = torch.einsum("bhqd,bhkd->bhqk", q, k) * (Dh ** -0.5)
        p = _softmax(scores, axis=-1)
        o = torch.einsum("bhqk,bhkd->bhqd", p, v)
        return (lambda x, *d: x.permute(*d))(o, 0, 2, 1, 3).reshape(B, Sq, Hq * Dh) @ wo

    def _B_ref(x, k_cache, v_cache, wq, wo):
        B, Sq, D = x.shape
        Hq, Dh = 32, 128
        Hkv, Sk = k_cache.shape[1], k_cache.shape[2]
        W = min(4096, max(256, Sk // 4))
        rep = Hq // Hkv
        q = (lambda x, *d: x.permute(*d))((x @ wq).reshape(B, Sq, Hq, Dh), 0, 2, 1, 3)
        k = (lambda x, n, axis: torch.repeat_interleave(x, n, dim=axis))(k_cache[:, :, Sk - W:, :], rep, axis=1)
        v = (lambda x, n, axis: torch.repeat_interleave(x, n, dim=axis))(v_cache[:, :, Sk - W:, :], rep, axis=1)
        scores = torch.einsum("bhqd,bhkd->bhqk", q, k) * (Dh ** -0.5)
        p = _softmax(scores, axis=-1)
        o = torch.einsum("bhqk,bhkd->bhqd", p, v)
        return (lambda x, *d: x.permute(*d))(o, 0, 2, 1, 3).reshape(B, Sq, Hq * Dh) @ wo

    a = _A_ref(A_x, A_k_cache, A_v_cache, A_wq, A_wo)
    b = _B_ref(B_x, B_k_cache, B_v_cache, B_wq, B_wo)
    return torch.concatenate([a, b], axis=-1)
```

```python
KN = "concat_heads__gqa_block_cached__sliding_block_cached__decode"
HEADER = open("cdna_kernels/%s.s.ref" % KN).read().split("; Override launch")[0]

class Asm:
    def __init__(self):
        self.lines = []
        self.nlabel = 0
    def __call__(self, s, *a):
        for ln in s.strip("\n").split("\n"):
            self.lines.append("    " + ln.strip())
    def label(self, name):
        self.lines.append(name + ":")
    def newlabel(self, p="L"):
        self.nlabel += 1
        return "%s_%d" % (p, self.nlabel)
    def comment(self, s):
        self.lines.append("    ; " + s)
    def text(self):
        return "\n".join(self.lines) + "\n"

def wrap(body, grid, block, lds, nvgpr, nsgpr=102, accum=None):
    if accum is None:
        accum = (nvgpr + 3) // 4 * 4
    s = HEADER
    s += "; @launch grid=(%d,1,1) block=(%d,1,1) lds=%d\n" % (grid, block, lds)
    s += '.amdgcn_target "amdgcn-amd-amdhsa--gfx950"\n.text\n'
    s += ".globl %s_kernel\n.p2align 8\n.type %s_kernel,@function\n%s_kernel:\n" % (KN, KN, KN)
    s += body
    s += '.section .rodata,"a"\n.p2align 6\n.amdhsa_kernel %s_kernel\n' % KN
    s += "  .amdhsa_next_free_vgpr %d\n  .amdhsa_next_free_sgpr %d\n  .amdhsa_accum_offset %d\n" % (nvgpr, nsgpr, accum)
    s += "  .amdhsa_group_segment_fixed_size 0\n  .amdhsa_kernarg_size 104\n  .amdhsa_user_sgpr_count 2\n"
    s += "  .amdhsa_user_sgpr_kernarg_segment_ptr 1\n  .amdhsa_system_sgpr_workgroup_id_x 1\n"
    s += "  .amdhsa_float_denorm_mode_32 3\n"
    s += ".end_amdhsa_kernel\n"
    return s
```

```python
import sys
from asmlib import *

EPOCH_OFF = 0x100
Q1_OFF = 0x10000
ML_OFF = 0x60000
P2_OFF = 0x100000
F_OFF = 0x400000
FSTRIDE = 8192 + 128
FSZ = 128 * FSTRIDE
TAGC = 0x9E3779B9
MX = 0
LS = 32
CTL = 64
C_QT = CTL + 0; C_QF = CTL + 4
C_MC = CTL + 12
C_PF = CTL + 20
C_OT = CTL + 40
C_PUB = CTL + 48
QACC = 128
OACC = 1024
ZERO = OACC + 4096
INIT_END = ZERO + 1024
QBUF = 6144
PBUF = 8192
LDS_BYTES = PBUF + 5 * 1024

LOG2E = 0x3fb8aa3b
SCALE = 0x3db504f3

class G(Asm):
    def nop(self, n):
        while n > 0:
            k = min(n, 16)
            self("s_nop %d" % (k - 1))
            n -= k
    def exec_set(self, lo, hi):
        self("s_mov_b32 exec_lo, 0x%x" % lo)
        self("s_mov_b32 exec_hi, 0x%x" % hi)
    def exec_all(self):
        self("s_mov_b64 exec, -1")
    def srd(self, d, lo, hi, nbytes):
        self("s_mov_b32 s%d, s%d" % (d, lo))
        self("s_mov_b32 s%d, s%d" % (d + 1, hi))
        self("s_mov_b32 s%d, 0x%x" % (d + 2, nbytes))
        self("s_mov_b32 s%d, 0x00020000" % (d + 3))
    def srd_sel(self, d, a_lo, b_lo, nbytes):
        self("s_cselect_b32 s%d, s%d, s%d" % (d, b_lo, a_lo))
        self("s_cselect_b32 s%d, s%d, s%d" % (d + 1, b_lo + 1, a_lo + 1))
        self("s_mov_b32 s%d, 0x%x" % (d + 2, nbytes))
        self("s_mov_b32 s%d, 0x00020000" % (d + 3))

def gen(nt="nt", stamps=False, spin_limit=1 << 22):
    a = G()
    nst = [0]
    def stamp(i):
        if stamps:
            a("s_memrealtime s[%d:%d]" % (76 + 2 * i, 77 + 2 * i))
    def lds_spin(addr_v, off, want_s_or_imm, tmpv, name, sleep=1):
        L = a.newlabel("spin_" + name); Ld = a.newlabel("spun_" + name)
        a("s_mov_b32 s58, 0")
        a.label(L)
        a("ds_read_b32 v%d, v%d offset:%d" % (tmpv, addr_v, off))
        a("s_waitcnt lgkmcnt(0)")
        a("v_readfirstlane_b32 s59, v%d" % tmpv)
        a("s_add_u32 s58, s58, 1")
        a("s_cmp_ge_u32 s58, %d" % spin_limit)
        a("s_cbranch_scc1 %s" % Ld)
        a("s_cmp_ge_u32 s59, %s" % want_s_or_imm)
        a("s_cbranch_scc1 %s" % Ld)
        a("s_sleep %d" % sleep)
        a("s_branch %s" % L)
        a.label(Ld)
    def tagcheck(regs, tag_s, t0, t1):
        assert len(regs) >= 3
        a("v_max3_u32 v%d, v%d, v%d, v%d" % (t0, regs[0], regs[1], regs[2]))
        a("v_min3_u32 v%d, v%d, v%d, v%d" % (t1, regs[0], regs[1], regs[2]))
        rest = regs[3:]
        while len(rest) >= 2:
            a("v_max3_u32 v%d, v%d, v%d, v%d" % (t0, t0, rest[0], rest[1]))
            a("v_min3_u32 v%d, v%d, v%d, v%d" % (t1, t1, rest[0], rest[1]))
            rest = rest[2:]
        if rest:
            a("v_max_u32 v%d, v%d, v%d" % (t0, t0, rest[0]))
            a("v_min_u32 v%d, v%d, v%d" % (t1, t1, rest[0]))
        a("v_xor_b32 v%d, s%d, v%d" % (t0, tag_s, t0))
        a("v_xor_b32 v%d, s%d, v%d" % (t1, tag_s, t1))
        a("v_or_b32 v%d, v%d, v%d" % (t0, t0, t1))
        a("v_cmp_ne_u32 vcc, 0, v%d" % t0)
    def gpoll(loads, tagregs, tag_s, t0, t1, name, sleep=2):
        L = a.newlabel("poll_" + name); Ld = a.newlabel("polled_" + name)
        a("s_mov_b32 s58, 0")
        a.label(L)
        for ld in loads: a(ld)
        a("s_add_u32 s58, s58, 1")
        a("s_waitcnt vmcnt(0)")
        tagcheck(tagregs, tag_s, t0, t1)
        a("s_cmp_ge_u32 s58, %d" % (spin_limit >> 4))
        a("s_cbranch_scc1 %s" % Ld)
        a.nop(2)
        a("s_cbranch_vccz %s" % Ld)
        a("s_sleep %d" % sleep)
        a("s_branch %s" % L)
        a.label(Ld)

    a("s_cmp_ge_u32 s2, 256")
    a("s_cbranch_scc1 L_end")
    stamp(0)
    a("s_load_dwordx2 s[28:29], s[0:1], 96")
    a("s_load_dwordx16 s[4:19], s[0:1], 0")
    a("s_load_dwordx8 s[20:27], s[0:1], 64")
    a("v_lshrrev_b32 v1, 6, v0")
    a("v_and_b32 v2, 63, v0")
    a("v_mov_b32 v3, 0")
    a("v_readfirstlane_b32 s3, v1")
    a("s_mov_b32 s56, 0x05040100")
    a("s_mov_b32 s57, 0x07060302")
    a("s_and_b32 s48, s2, 15")
    a("s_lshr_b32 s49, s2, 4")
    a("s_waitcnt lgkmcnt(0)")
    a.srd(40, 28, 29, 0x10000000)
    a("s_cmp_lt_u32 s3, 2")
    a("s_cbranch_scc1 L_service")

    a("v_subrev_u32 v4, 128, v0")
    a("v_lshlrev_b32 v4, 4, v4")
    a("v_mov_b32 v8, 0xff800000")
    a("v_cmp_gt_u32 vcc, 32, v4")
    a("s_mov_b32 s50, %d" % INIT_END)
    a("s_nop 0")
    a("v_cndmask_b32 v8, 0, v8, vcc")
    a("v_cmp_gt_u32 vcc, s50, v4")
    a("v_mov_b32 v9, v8")
    a("v_mov_b32 v10, v8")
    a("v_mov_b32 v11, v8")
    a("s_and_saveexec_b64 s[50:51], vcc")
    a("ds_write_b128 v4, v[8:11]")
    a("s_mov_b64 exec, s[50:51]")
    a("s_cmp_lt_u32 s3, 4")
    a("s_cselect_b32 s52, 1, 0")
    a("s_and_b32 s54, s3, 3")
    a("s_cmp_lt_u32 s3, 4")
    a("s_cselect_b32 s54, 4, s54")
    a("s_lshl_b32 s55, s48, 9")
    a("s_lshl_b32 s60, s54, 7")
    a("s_add_u32 s55, s55, s60")
    a("s_lshl_b32 s60, s48, 7")
    a("s_add_u32 s60, s60, 6144")
    a("s_cmp_lt_u32 s3, 4")
    a("s_cselect_b32 s55, s60, s55")
    a("s_lshl_b32 s60, s49, 13")
    a("s_add_u32 s55, s55, s60")
    a("s_lshl_b32 s60, s55, 8")
    for t in range(1, 8):
        a("s_add_u32 s%d, s60, %d" % (60 + t, 4096 * t))
    a("s_cmp_eq_u32 s3, 3")
    a("s_cselect_b32 s53, 1, 0")
    a("s_cmp_ge_u32 s3, 8")
    a("s_cselect_b32 s53, 1, s53")
    a("s_cmp_eq_u32 s53, 1")
    a("s_cbranch_scc1 L_vwave")

    a("s_cmp_eq_u32 s52, 1")
    a.srd_sel(32, 6, 16, 0x2000000)
    a("v_and_b32 v4, 3, v2")
    a("v_lshlrev_b32 v4, 2, v4")
    a("v_bfe_u32 v5, v2, 2, 2")
    a("v_add_u32 v4, v4, v5")
    a("v_lshlrev_b32 v4, 8, v4")
    a("v_lshrrev_b32 v5, 4, v2")
    a("v_lshl_add_u32 v4, v5, 4, v4")
    a("s_waitcnt lgkmcnt(0)")
    a("s_barrier")
    KR = 8
    for t in range(8):
        for j in range(4):
            r = KR + t * 16 + j * 4
            a("buffer_load_dwordx4 v[%d:%d], v4, s[32:35], s%d offen offset:%d %s" % (r, r + 3, 60 + t, 64 * j, nt))
    stamp(1)
    a("v_and_b32 v6, 3, v2")
    a("v_lshlrev_b32 v6, 8, v6")
    a("v_lshl_add_u32 v6, v5, 4, v6")
    a("s_lshl_b32 s68, s52, 10")
    a("v_add_u32 v6, s68, v6")
    a("s_lshl_b32 s69, s52, 2")
    a("v_mov_b32 v7, s69")
    lds_spin(7, C_QF, "1", 1, "q")
    stamp(2)
    QR = 136
    for j in range(4):
        a("ds_read_b128 v[%d:%d], v6 offset:%d" % (QR + 4 * j, QR + 4 * j + 3, QBUF + 64 * j))
    a("s_waitcnt lgkmcnt(0)")
    def SR(t): return 152 if t == 0 else KR + 16 * (t - 1)
    for t in range(8):
        a("s_waitcnt vmcnt(%d)" % (28 - 4 * t))
        for j in range(4):
            r = KR + t * 16 + j * 4
            c = "0" if j == 0 else "v[%d:%d]" % (SR(t), SR(t) + 3)
            a("v_mfma_f32_16x16x32_bf16 v[%d:%d], v[%d:%d], v[%d:%d], %s" % (SR(t), SR(t) + 3, r, r + 3, QR + 4 * j, QR + 4 * j + 3, c))
    stamp(3)
    a.nop(8)
    T0, T1 = 156, 157
    for t in range(8):
        for p in range(2):
            r = SR(t) + 2 * p
            a("v_cvt_pk_bf16_f32 v%d, v%d, v%d" % (T0, r, r + 1))
            a("v_lshlrev_b32 v%d, 16, v%d" % (r, T0))
            a("v_and_b32 v%d, 0xffff0000, v%d" % (r + 1, T0))
            a("v_mul_f32 v%d, 0x%x, v%d" % (r, SCALE, r))
            a("v_mul_f32 v%d, 0x%x, v%d" % (r + 1, SCALE, r + 1))
            a("v_cvt_pk_bf16_f32 v%d, v%d, v%d" % (T0, r, r + 1))
            a("v_lshlrev_b32 v%d, 16, v%d" % (r, T0))
            a("v_and_b32 v%d, 0xffff0000, v%d" % (r + 1, T0))
    allS = [SR(t) + r for t in range(8) for r in range(4)]
    a("v_max3_f32 v%d, v%d, v%d, v%d" % (T1, allS[0], allS[1], allS[2]))
    rest = allS[3:]
    while len(rest) >= 2:
        a("v_max3_f32 v%d, v%d, v%d, v%d" % (T1, T1, rest[0], rest[1])); rest = rest[2:]
    a("v_max_f32 v%d, v%d, v%d" % (T1, T1, rest[0]))
    a("v_and_b32 v158, 3, v2")
    a("v_lshlrev_b32 v158, 2, v158")
    a("s_lshl_b32 s68, s52, 4")
    a("v_add_u32 v158, s68, v158")
    a.exec_set(0x000F000F, 0x000F000F)
    a("ds_max_f32 v158, v%d offset:%d" % (T1, MX))
    a("s_mov_b64 exec, 1")
    a("v_mov_b32 v159, 1")
    a("ds_add_u32 v7, v159 offset:%d" % C_MC)
    a.exec_all()
    a("s_cmp_eq_u32 s52, 1")
    a("s_cselect_b32 s68, 1, 4")
    lds_spin(7, C_MC, "s68", 1, "mx", sleep=0)
    a("ds_read_b32 v%d, v158 offset:%d" % (T1, MX))
    a("s_mov_b32 s69, 0x%x" % LOG2E)
    a("s_waitcnt lgkmcnt(0)")
    a("v_mul_f32 v%d, s69, v%d" % (T1, T1))
    for r in allS:
        a("v_fma_f32 v%d, v%d, s69, -v%d" % (r, r, T1))
    for r in allS:
        a("v_exp_f32 v%d, v%d" % (r, r))
    a.nop(1)
    a("v_add_f32 v%d, v%d, v%d" % (T0, allS[0], allS[1]))
    a("v_add_f32 v%d, v%d, v%d" % (T1, allS[2], allS[3]))
    for k in range(4, 32, 2):
        a("v_add_f32 v%d, v%d, v%d" % (T0, T0, allS[k]))
        a("v_add_f32 v%d, v%d, v%d" % (T1, T1, allS[k + 1]))
    a("v_add_f32 v%d, v%d, v%d" % (T0, T0, T1))
    for b2 in range(4):
        for u in range(4):
            r = SR(2 * b2 + (u >> 1)) + 2 * (u & 1)
            a("v_cvt_pk_bf16_f32 v%d, v%d, v%d" % (QR + 4 * b2 + u, r, r + 1))
    a("v_and_b32 v6, 3, v2")
    a("v_lshl_add_u32 v6, v6, 2, v5")
    a("v_lshlrev_b32 v6, 4, v6")
    a("s_lshl_b32 s68, s54, 10")
    a("v_add_u32 v6, s68, v6")
    a.exec_set(0x000F000F, 0x000F000F)
    a("ds_add_f32 v158, v%d offset:%d" % (T0, LS))
    for b2 in range(4):
        a("ds_write_b128 v6, v[%d:%d] offset:%d" % (QR + 4 * b2, QR + 4 * b2 + 3, PBUF + 256 * b2))
    a("s_mov_b64 exec, 1")
    a("s_lshl_b32 s68, s54, 2")
    a("v_mov_b32 v6, s68")
    a("ds_write_b32 v6, v159 offset:%d" % C_PF)
    a.exec_all()
    stamp(4)
    a("s_branch L_fin")

    a.label("L_vwave")
    a("s_cmp_eq_u32 s52, 1")
    a.srd_sel(32, 8, 18, 0x2000000)
    a("v_lshlrev_b32 v4, 4, v2")
    a("s_waitcnt lgkmcnt(0)")
    a("s_barrier")
    VR = 8
    for u in range(32):
        r = VR + 4 * u
        a("buffer_load_dwordx4 v[%d:%d], v4, s[32:35], s%d offen offset:%d %s" % (r, r + 3, 60 + (u >> 2), 1024 * (u & 3), nt))
    stamp(1)
    a("s_load_dwordx2 s[30:31], s[28:29], 0x%x" % EPOCH_OFF)
    a("v_lshrrev_b32 v1, 4, v2")
    a("v_and_b32 v0, 3, v2")
    a("v_lshl_add_u32 v0, v0, 2, v1")
    a("v_lshlrev_b32 v0, 4, v0")
    a("s_lshl_b32 s68, s54, 10")
    a("s_add_u32 s68, s68, %d" % PBUF)
    a("v_add_u32 v0, s68, v0")
    a("v_mov_b32 v1, %d" % ZERO)
    for gam in range(4):
        m = 0xF << (4 * gam); m = m | (m << 16)
        a("s_mov_b32 s70, 0x%x" % m)
        a("s_mov_b32 s71, 0x%x" % m)
        a("v_cndmask_b32 v%d, v1, v0, s[70:71]" % (4 + gam))
    a("s_lshl_b32 s68, s54, 2")
    a("v_mov_b32 v0, s68")
    lds_spin(0, C_PF, "1", 1, "p")
    stamp(2)
    PA0 = 136; TT = 152; DD = 160
    def PA(b2): return PA0 if b2 == 0 else (VR + 16 * ((b2 - 1) & 1)) if b2 < 3 else VR + 32
    def readP(b2):
        for gam in range(4):
            r = PA(b2) + 4 * gam
            a("ds_read_b128 v[%d:%d], v%d offset:%d" % (r, r + 3, 4 + gam, 256 * b2))
    readP(0)
    first = True
    for b2 in range(4):
        a("s_waitcnt vmcnt(%d) lgkmcnt(0)" % (24 - 8 * b2))
        if b2 == 3: stamp(3)
        k = 0
        for w in range(4):
            for e in range(2):
                T = TT + 4 * (k & 1)
                for u in range(4):
                    lo = VR + (8 * b2 + 2 * u) * 4 + w
                    hi = VR + (8 * b2 + 2 * u + 1) * 4 + w
                    a("v_perm_b32 v%d, v%d, v%d, s%d" % (T + u, hi, lo, 56 + e))
                a.nop(2)
                c = "0" if (b2 == 0 and w == 0) else "v[%d:%d]" % (DD + 4 * e, DD + 4 * e + 3)
                a("v_mfma_f32_16x16x32_bf16 v[%d:%d], v[%d:%d], v[%d:%d], %s" % (DD + 4 * e, DD + 4 * e + 3, PA(b2) + 4 * w, PA(b2) + 4 * w + 3, T, T + 3, c))
                k += 1
        if b2 == 0:
            readP(1); readP(2)
        if b2 == 1:
            readP(3)
    stamp(5)
    a("v_lshlrev_b32 v0, 2, v2")
    a("s_lshl_b32 s68, s52, 11")
    a("v_add_u32 v0, s68, v0")
    a("s_lshl_b32 s69, s52, 2")
    a("v_mov_b32 v1, s69")
    a("v_mov_b32 v4, 1")
    a("v_lshlrev_b32 v5, 2, v2")
    a("s_lshl_b32 s68, s52, 4")
    a("v_add_u32 v5, s68, v5")
    a("v_and_b32 v5, 31, v5")
    a.nop(2)
    for q in range(8):
        a("ds_add_f32 v0, v%d offset:%d" % (DD + q, OACC + 256 * q))
    a("s_mov_b64 exec, 1")
    a("ds_add_rtn_u32 v6, v1, v4 offset:%d" % C_OT)
    a.exec_all()
    for r in range(4):
        a("ds_read_b32 v%d, v0 offset:%d" % (8 + 4 * r, OACC + 256 * r))
        a("ds_read_b32 v%d, v0 offset:%d" % (8 + 4 * r + 2, OACC + 256 * (4 + r)))
    a("ds_read_b32 v24, v5 offset:%d" % MX)
    a("ds_read_b32 v26, v5 offset:%d" % LS)
    a("s_cmp_eq_u32 s52, 1")
    a("s_cselect_b32 s70, s31, s30")
    a("s_cselect_b32 s71, 0, 3")
    a("s_add_u32 s70, s70, 0x%x" % TAGC)
    for r in range(5):
        a("v_mov_b32 v%d, s70" % (8 + 4 * r + 1))
        a("v_mov_b32 v%d, s70" % (8 + 4 * r + 3))
    a("v_and_b32 v28, 15, v2")
    a("v_lshrrev_b32 v29, 4, v2")
    a("v_lshl_add_u32 v28, v28, 2, v29")
    a("v_lshlrev_b32 v28, 4, v28")
    a("s_lshl_b32 s68, s52, 4")
    a("s_add_u32 s68, s68, s49")
    a("s_lshl_b32 s69, s68, 16")
    a("s_lshl_b32 s72, s48, 10")
    a("s_add_u32 s69, s69, s72")
    a("s_add_u32 s60, s69, 0x%x" % P2_OFF)
    for h in range(1, 4):
        a("s_add_u32 s%d, s60, %d" % (60 + h, h * 16384))
    a("s_lshl_b32 s69, s68, 10")
    a("s_lshl_b32 s72, s48, 4")
    a("s_add_u32 s69, s69, s72")
    a("s_add_u32 s64, s69, 0x%x" % ML_OFF)
    a("v_lshlrev_b32 v29, 8, v2")
    a("s_mov_b32 s69, 0x%x" % LOG2E)
    a("s_waitcnt lgkmcnt(0)")
    stamp(6)
    a("v_readfirstlane_b32 s72, v6")
    a("v_mul_f32 v24, s69, v24")
    a("s_cmp_lg_u32 s72, s71")
    a("s_cbranch_scc1 L_fin")
    for h in range(4):
        a("buffer_store_dwordx4 v[%d:%d], v28, s[40:43], s%d offen sc1" % (8 + 4 * h, 8 + 4 * h + 3, 60 + h))
    a("s_mov_b64 exec, 15")
    a("buffer_store_dwordx4 v[24:27], v29, s[40:43], s64 offen sc1")
    a("s_mov_b64 exec, 1")
    a("ds_write_b32 v1, v4 offset:%d" % C_PUB)
    a.exec_all()
    stamp(4)
    a("s_branch L_fin")

    a.label("L_service")
    a("s_lshr_b32 s52, s2, 7")
    a("s_bfe_u32 s53, s2, 0x10006")
    a("s_and_b32 s54, s2, 63")
    a("s_cmp_eq_u32 s52, 1")
    a.srd_sel(32, 10, 20, 0x400000)
    a.srd_sel(44, 4, 14, 2048)
    a("s_lshl_b32 s55, s53, 8")
    a("s_lshl_b32 s68, s3, 7")
    a("s_add_u32 s55, s55, s68")
    a("s_lshl_b32 s68, s55, 13")
    a("s_lshl_b32 s69, s54, 7")
    a("s_add_u32 s60, s68, s69")
    WS = [60, 61, 62, 63, 64, 65, 66, 67, 68, 69, 70, 71, 72, 73, 74, 75]
    for u in range(1, 16):
        blk, i = u // 8, u % 8
        a("s_add_u32 s%d, s60, %d" % (WS[u], (64 * blk + i) * 8192))
    a("v_and_b32 v4, 7, v2")
    a("v_lshlrev_b32 v4, 4, v4")
    a("v_bfe_u32 v5, v2, 3, 1")
    a("v_lshl_add_u32 v4, v5, 18, v4")
    a("v_lshrrev_b32 v6, 4, v2")
    a("v_lshl_add_u32 v4, v6, 16, v4")
    a("v_and_b32 v7, 1, v2")
    a("v_lshlrev_b32 v7, 10, v7")
    a("v_lshl_add_u32 v7, v5, 6, v7")
    a("v_lshl_add_u32 v7, v6, 4, v7")
    a("s_lshl_b32 s59, s55, 1")
    XR = 136
    a("buffer_load_dwordx4 v[%d:%d], v7, s[44:47], s59 offen" % (XR, XR + 3))
    a("buffer_load_dwordx4 v[%d:%d], v7, s[44:47], s59 offen offset:128" % (XR + 4, XR + 7))
    WR = 8
    for u in range(16):
        r = WR + 4 * u
        a("buffer_load_dwordx4 v[%d:%d], v4, s[32:35], s%d offen %s" % (r, r + 3, WS[u], nt))
    a("s_barrier")
    stamp(1)
    a("s_load_dwordx2 s[30:31], s[28:29], 0x%x" % EPOCH_OFF)
    XA = 72
    a("s_waitcnt vmcnt(16)")
    for gam in range(4):
        m = (3 << (2 * gam)) * 0x01010101
        a("s_mov_b32 s60, 0x%x" % m)
        a("s_mov_b32 s61, 0x%x" % m)
        for blk in range(2):
            for u in range(4):
                a("v_cndmask_b32 v%d, 0, v%d, s[60:61]" % (XA + (blk * 4 + gam) * 4 + u, XR + 4 * blk + u))
    TT = 152; DD = 160
    a("v_and_b32 v4, 7, v2")
    a("v_lshlrev_b32 v4, 5, v4")
    a("v_and_b32 v5, 1, v6")
    a("v_lshl_add_u32 v4, v5, 4, v4")
    for blk in range(2):
        a("s_waitcnt vmcnt(%d)" % (8 - 8 * blk))
        k = 0
        for w in range(4):
            for e in range(2):
                T = TT + 4 * (k & 1)
                for u in range(4):
                    lo = WR + (8 * blk + 2 * u) * 4 + w
                    hi = WR + (8 * blk + 2 * u + 1) * 4 + w
                    a("v_perm_b32 v%d, v%d, v%d, s%d" % (T + u, hi, lo, 56 + e))
                a.nop(2)
                c = "0" if (blk == 0 and w == 0) else "v[%d:%d]" % (DD + 4 * e, DD + 4 * e + 3)
                A = XA + (blk * 4 + w) * 4
                a("v_mfma_f32_16x16x32_bf16 v[%d:%d], v[%d:%d], v[%d:%d], %s" % (DD + 4 * e, DD + 4 * e + 3, A, A + 3, T, T + 3, c))
                k += 1
    stamp(2)
    a("v_mov_b32 v5, 1")
    a("v_lshlrev_b32 v7, 3, v2")
    a.nop(8)
    a.exec_set(0x00FF00FF, 0xFF00FF00)
    for e in range(2):
        for r in range(4):
            a("ds_add_f32 v4, v%d offset:%d" % (DD + 4 * e + r, QACC + ((r & 1) * 64 + 2 * (r >> 1) + e) * 4))
    a("s_mov_b64 exec, 1")
    a("ds_add_rtn_u32 v6, v3, v5 offset:%d" % C_QT)
    a.exec_all()
    a("ds_read_b32 v8, v7 offset:%d" % QACC)
    a("ds_read_b32 v10, v7 offset:%d" % (QACC + 4))
    a("s_waitcnt lgkmcnt(0)")
    a("s_add_u32 s30, s30, 0x%x" % TAGC)
    a("s_add_u32 s31, s31, 0x%x" % TAGC)
    a("s_cmp_eq_u32 s52, 1")
    a("s_cselect_b32 s60, s31, s30")
    a("v_mov_b32 v9, s60")
    a("v_mov_b32 v11, s60")
    a("v_readfirstlane_b32 s61, v6")
    a("v_and_b32 v12, 31, v2")
    a("v_lshlrev_b32 v12, 4, v12")
    a("v_lshrrev_b32 v13, 5, v2")
    a("v_lshl_add_u32 v12, v13, 16, v12")
    a("s_lshl_b32 s62, s52, 17")
    a("s_lshl_b32 s63, s53, 15")
    a("s_add_u32 s62, s62, s63")
    a("s_lshl_b32 s63, s54, 9")
    a("s_add_u32 s62, s62, s63")
    a("s_add_u32 s62, s62, 0x%x" % Q1_OFF)
    a("s_cmp_lg_u32 s61, 1")
    a("s_cbranch_scc1 L_noqpub")
    a("buffer_store_dwordx4 v[8:11], v12, s[40:43], s62 offen sc1")
    a.label("L_noqpub")
    stamp(3)
    a("s_cmp_eq_u32 s3, 1")
    a("s_cselect_b32 s50, s31, s30")
    a.srd_sel(36, 12, 22, 0x400000)
    a("s_lshr_b32 s60, s49, 3")
    a("s_and_b32 s61, s49, 7")
    a("s_lshl_b32 s62, s3, 1")
    a("s_add_u32 s62, s62, s60")
    a("s_lshl_b32 s62, s62, 16")
    a("s_lshl_b32 s61, s61, 12")
    a("s_add_u32 s62, s62, s61")
    a("s_add_u32 s62, s62, 0x%x" % Q1_OFF)
    a("s_add_u32 s63, s62, 32768")
    a("v_lshlrev_b32 v4, 4, v2")
    PR = 16
    loads = []; tags = []
    for kap in range(2):
        for u in range(4):
            r = PR + (kap * 4 + u) * 4
            loads.append("buffer_load_dwordx4 v[%d:%d], v4, s[40:43], s%d offen offset:%d sc1" % (r, r + 3, 62 + kap, 1024 * u))
            tags += [r + 1, r + 3]
    gpoll(loads, tags, 50, 5, 6, "q", sleep=4)
    a("v_lshlrev_b32 v4, 2, v2")
    a("s_lshl_b32 s60, s3, 10")
    a("v_add_u32 v4, s60, v4")
    for u in range(4):
        r0 = PR + u * 4; r1 = PR + (4 + u) * 4
        a("v_add_f32 v%d, v%d, v%d" % (r0, r0, r1))
        a("v_add_f32 v%d, v%d, v%d" % (r0 + 2, r0 + 2, r1 + 2))
        a("v_cvt_pk_bf16_f32 v%d, v%d, v%d" % (r0, r0, r0 + 2))
        a("ds_write_b32 v4, v%d offset:%d" % (r0, QBUF + 256 * u))
    a("s_lshl_b32 s60, s3, 2")
    a("v_mov_b32 v7, s60")
    a("v_mov_b32 v5, 1")
    a("ds_write_b32 v7, v5 offset:%d" % C_QF)
    stamp(4)
    a("s_lshr_b32 s52, s2, 1")
    a("s_and_b32 s53, s2, 1")
    a("s_lshl_b32 s60, s52, 15")
    a("s_lshl_b32 s61, s53, 9")
    a("s_add_u32 s60, s60, s61")
    for u in range(1, 4):
        a("s_add_u32 s%d, s60, %d" % (60 + u, 8192 * u))
    a("v_and_b32 v4, 15, v2")
    a("v_lshrrev_b32 v6, 4, v2")
    a("v_lshlrev_b32 v5, 4, v4")
    a("v_lshl_add_u32 v5, v6, 11, v5")
    for blk in range(2):
        for i in range(8):
            r = WR + (blk * 8 + i) * 4
            a("buffer_load_dwordx4 v[%d:%d], v5, s[36:39], s%d offen offset:%d %s" % (r, r + 3, 60 + (i >> 1), (i & 1) * 1024 + blk * 256, nt))
    a("v_bfe_u32 v140, v2, 1, 1")
    a("v_and_b32 v141, 1, v2")
    a("v_bfe_u32 v142, v2, 2, 2")
    a("v_lshl_add_u32 v141, v142, 1, v141")
    a("v_lshlrev_b32 v136, 19, v140")
    a("v_lshl_add_u32 v136, v141, 11, v136")
    a("v_lshl_add_u32 v136, v6, 4, v136")
    a("v_lshlrev_b32 v137, 13, v140")
    a("v_lshl_add_u32 v137, v141, 5, v137")
    a("s_lshr_b32 s64, s52, 2")
    a("s_and_b32 s65, s52, 3")
    a("s_lshl_b32 s66, s3, 20")
    a("s_lshl_b32 s67, s64, 14")
    a("s_add_u32 s66, s66, s67")
    a("s_lshl_b32 s67, s65, 8")
    a("s_add_u32 s66, s66, s67")
    a("s_add_u32 s66, s66, 0x%x" % P2_OFF)
    a("s_lshl_b32 s67, s3, 14")
    a("s_lshl_b32 s68, s64, 8")
    a("s_add_u32 s67, s67, s68")
    a("s_add_u32 s67, s67, 0x%x" % ML_OFF)
    a("s_mul_i32 s68, s3, %d" % FSZ)
    a("s_mul_i32 s69, s52, %d" % FSTRIDE)
    a("s_add_u32 s69, s69, s68")
    a("s_lshl_b32 s70, s53, 12")
    a("s_add_u32 s69, s69, s70")
    a("s_add_u32 s69, s69, 0x%x" % F_OFF)
    a("v_lshlrev_b32 v138, 4, v4")
    a("s_lshl_b32 s70, s2, 5")
    a("s_add_u32 s70, s70, s68")
    a("s_add_u32 s70, s70, 0x%x" % F_OFF)
    a("s_add_u32 s71, s70, %d" % (64 * FSTRIDE))
    a("s_mov_b32 s72, %d" % FSTRIDE)
    a("v_mul_lo_u32 v139, s72, v2")
    a("s_lshr_b32 s72, s2, 6")
    a("s_lshl_b32 s72, s72, 7")
    a("s_and_b32 s73, s2, 7")
    a("s_lshl_b32 s73, s73, 4")
    a("s_add_u32 s72, s72, s73")
    a("s_bfe_u32 s73, s2, 0x30003")
    a("s_add_u32 s72, s72, s73")
    a("s_lshl_b32 s73, s3, 9")
    a("s_add_u32 s72, s72, s73")
    a("s_lshl_b32 s72, s72, 1")
    a("v_and_b32 v140, 1, v6")
    a("v_lshlrev_b32 v140, 11, v140")
    a("v_lshrrev_b32 v141, 1, v6")
    a("v_lshl_add_u32 v140, v141, 4, v140")
    a.srd(44, 24, 25, 4096)
    WB = 72
    for blk in range(2):
        a("s_waitcnt vmcnt(%d)" % (8 - 8 * blk))
        for w in range(4):
            for e in range(2):
                T = WB + (blk * 8 + 2 * w + e) * 4
                for u in range(4):
                    lo = WR + (8 * blk + 2 * u) * 4 + w
                    hi = WR + (8 * blk + 2 * u + 1) * 4 + w
                    a("v_perm_b32 v%d, v%d, v%d, s%d" % (T + u, hi, lo, 56 + e))
    stamp(5)
    lds_spin(7, C_PUB, "1", 1, "pub", sleep=2)
    stamp(6)
    PR = 8
    loads = []; tags = []
    for sl in range(2):
        r = PR + 32 + 4 * sl
        loads.append("buffer_load_dwordx4 v[%d:%d], v137, s[40:43], s67 offen offset:%d sc1" % (r, r + 3, 16 * sl))
        tags += [r + 1, r + 3]
    for sl in range(2):
        for u in range(4):
            r = PR + (sl * 4 + u) * 4
            loads.append("buffer_load_dwordx4 v[%d:%d], v136, s[40:43], s66 offen offset:%d sc1" % (r, r + 3, 1024 * sl + 64 * u))
            tags += [r + 1, r + 3]
    gpoll(loads, tags, 50, 5, 4, "h2", sleep=1)
    stamp(7)
    M0, L0, M1, L1 = PR + 32, PR + 34, PR + 36, PR + 38
    def dpp3(op, r):
        a.nop(2)
        a("%s_dpp v%d, v%d, v%d quad_perm:[1,0,3,2] row_mask:0xf bank_mask:0xf" % (op, r, r, r))
        a.nop(2)
        a("%s_dpp v%d, v%d, v%d row_ror:4 row_mask:0xf bank_mask:0xf" % (op, r, r, r))
        a.nop(2)
        a("%s_dpp v%d, v%d, v%d row_ror:8 row_mask:0xf bank_mask:0xf" % (op, r, r, r))
    a("v_max_f32 v50, v%d, v%d" % (M0, M1))
    dpp3("v_max_f32", 50)
    a("v_sub_f32 v%d, v%d, v50" % (M0, M0))
    a("v_sub_f32 v%d, v%d, v50" % (M1, M1))
    a("v_exp_f32 v%d, v%d" % (M0, M0))
    a("v_exp_f32 v%d, v%d" % (M1, M1))
    a.nop(1)
    a("v_mul_f32 v50, v%d, v%d" % (M0, L0))
    a("v_fmac_f32 v50, v%d, v%d" % (M1, L1))
    vals = []
    for u in range(4):
        for e in range(2):
            r0 = PR + u * 4 + 2 * e; r1 = PR + (4 + u) * 4 + 2 * e
            a("v_mul_f32 v%d, v%d, v%d" % (r0, M0, r0))
            a("v_fmac_f32 v%d, v%d, v%d" % (r0, M1, r1))
            vals.append(r0)
    vals.append(50)
    for ctrl in ("quad_perm:[1,0,3,2]", "row_ror:4", "row_ror:8"):
        for r in vals:
            a("v_add_f32_dpp v%d, v%d, v%d %s row_mask:0xf bank_mask:0xf" % (r, r, r, ctrl))
    a("v_rcp_f32 v50, v50")
    a.nop(1)
    for r in vals[:8]:
        a("v_mul_f32 v%d, v50, v%d" % (r, r))
    AO = 52
    for u in range(4):
        a("v_cvt_pk_bf16_f32 v%d, v%d, v%d" % (AO + u, vals[2 * u], vals[2 * u + 1]))
    a.nop(2)
    Dq = [8, 12, 16, 20, 24, 28, 32, 36, 40, 44, 144, 148, 152, 156, 160, 164]
    def emit_store(k):
        d = Dq[k]; blk, jp = k // 8, k % 8
        a("v_mov_b32 v%d, s50" % (d + 1))
        a("v_mov_b32 v%d, s50" % (d + 3))
        a.exec_set(0xffff, 0)
        a("buffer_store_dwordx4 v[%d:%d], v138, s[40:43], s69 offen offset:%d sc1" % (d, d + 3, blk * 2048 + jp * 256))
        a.exec_all()
    for k in range(16):
        d = Dq[k]; B = WB + 4 * k
        a("v_mfma_f32_16x16x32_bf16 v[%d:%d], v[%d:%d], v[%d:%d], 0" % (d, d + 3, AO, AO + 3, B, B + 3))
    a.nop(8)
    for k in range(16):
        d = Dq[k]
        a("v_mov_b32 v%d, s50" % (d + 1))
        a("v_mov_b32 v%d, s50" % (d + 3))
    a.exec_set(0xffff, 0)
    for k in range(16):
        d = Dq[k]; blk, jp = k // 8, k % 8
        a("buffer_store_dwordx4 v[%d:%d], v138, s[40:43], s69 offen offset:%d sc1" % (d, d + 3, blk * 2048 + jp * 256))
    a.exec_all()
    stamp(8)
    PR = 72
    loads = []; tags = []
    for hf in range(2):
        for e in range(2):
            r = PR + (hf * 2 + e) * 4
            loads.append("buffer_load_dwordx4 v[%d:%d], v139, s[40:43], s%d offen offset:%d sc1" % (r, r + 3, 70 + hf, 16 * e))
            tags += [r + 1, r + 3]
    gpoll(loads, tags, 50, 5, 4, "h3", sleep=1)
    stamp(9)
    for k in (0, 2, 4, 6):
        a("v_add_f32 v%d, v%d, v%d" % (PR + k, PR + k, PR + 8 + k))
    a.nop(2)
    a("v_permlane32_swap_b32 v%d, v%d" % (PR + 0, PR + 4))
    a("v_permlane32_swap_b32 v%d, v%d" % (PR + 2, PR + 6))
    a.nop(2)
    a("v_add_f32 v%d, v%d, v%d" % (PR + 0, PR + 0, PR + 4))
    a("v_add_f32 v%d, v%d, v%d" % (PR + 2, PR + 2, PR + 6))
    a.nop(2)
    a("v_permlane16_swap_b32 v%d, v%d" % (PR + 0, PR + 2))
    a.nop(2)
    a("v_add_f32 v%d, v%d, v%d" % (PR, PR, PR + 2))
    for sh in (8, 4, 2, 1):
        a.nop(2)
        a("v_add_f32_dpp v%d, v%d, v%d row_ror:%d row_mask:0xf bank_mask:0xf" % (PR, PR, PR, sh))
    a("v_cvt_pk_bf16_f32 v%d, v%d, v%d" % (PR, PR, PR))
    a.exec_set(0x00010001, 0x00010001)
    a("buffer_store_short v%d, v140, s[44:47], s72 offen" % PR)
    a("s_cmp_lg_u32 s2, 0")
    a("s_cbranch_scc1 L_noep")
    a("s_mov_b64 exec, 1")
    a("v_mov_b32 v5, s50")
    a("buffer_store_dword v5, v7, s[40:43], 0 offen offset:%d" % EPOCH_OFF)
    a.label("L_noep")
    a.exec_all()
    stamp(10)

    a.label("L_fin")
    if stamps:
        a("s_waitcnt vmcnt(0) lgkmcnt(0)")
        a("s_memrealtime s[98:99]")
        a("s_lshl_b32 s52, s2, 4")
        a("s_add_u32 s52, s52, s3")
        a("s_lshl_b32 s52, s52, 7")
        a("s_add_u32 s52, s52, 0x8000000")
        a("s_waitcnt lgkmcnt(0)")
        a("v_mov_b32 v1, 0")
        for k in range(24):
            a("v_mov_b32 v%d, s%d" % (8 + k, 76 + k))
        a("s_mov_b64 exec, 1")
        for k in range(6):
            a("buffer_store_dwordx4 v[%d:%d], v1, s[40:43], s52 offen offset:%d" % (8 + 4 * k, 11 + 4 * k, 16 * k))
    a.label("L_end")
    a("s_endpgm")
    return wrap(a.text(), 256, 768, LDS_BYTES, 168)

if __name__ == "__main__":
    open("k_nt.s", "w").write(gen("nt"))
    open("k_def.s", "w").write(gen(""))
    open("k_nt_st.s", "w").write(gen("nt", stamps=True))
    open("k_def_st.s", "w").write(gen("", stamps=True))
```

```python
import sys
from asmlib import *

EPOCH_OFF = 0x100
Q1_OFF = 0x10000
ML_OFF = 0x60000
P2_OFF = 0x100000
F_OFF = 0x400000
FSTRIDE = 8192 + 128
FSZ = 128 * FSTRIDE
TAGC = 0x9E3779B9
MX = 0; LS = 32; CTL = 64
C_QT = CTL + 0; C_QF = CTL + 4; C_MC = CTL + 12; C_PF = CTL + 20; C_OT = CTL + 40; C_PUB = CTL + 48
C_KI = CTL + 56; C_QP = CTL + 60
ZERO = 128
INIT_END = ZERO + 1024
QSL = 2048
QBUF = 4096
PBUF = 6144
OSL = 11264
LDS_BYTES = OSL + 5 * 2048

LOG2E = 0x3fb8aa3b
SCALE = 0x3db504f3

class G(Asm):
    def nop(self, n):
        while n > 0:
            k = min(n, 16)
            self("s_nop %d" % (k - 1))
            n -= k
    def exec_set(self, lo, hi):
        self("s_mov_b32 exec_lo, 0x%x" % lo)
        self("s_mov_b32 exec_hi, 0x%x" % hi)
    def exec_all(self):
        self("s_mov_b64 exec, -1")
    def srd(self, d, lo, hi, nbytes):
        self("s_mov_b32 s%d, s%d" % (d, lo))
        self("s_mov_b32 s%d, s%d" % (d + 1, hi))
        self("s_mov_b32 s%d, 0x%x" % (d + 2, nbytes))
        self("s_mov_b32 s%d, 0x00020000" % (d + 3))
    def srd_sel(self, d, a_lo, b_lo, nbytes):
        self("s_cselect_b32 s%d, s%d, s%d" % (d, b_lo, a_lo))
        self("s_cselect_b32 s%d, s%d, s%d" % (d + 1, b_lo + 1, a_lo + 1))
        self("s_mov_b32 s%d, 0x%x" % (d + 2, nbytes))
        self("s_mov_b32 s%d, 0x00020000" % (d + 3))

def gen(nt="nt", stamps=False, dbg=False, spin_limit=1 << 22, kpre=4, sentinel=True, psleep=0, warm=True, few=16, h2sleep=2):
    a = G()
    def stamp(i):
        if stamps or (dbg and i == 0):
            a("s_memrealtime s[%d:%d]" % (76 + 2 * i, 77 + 2 * i))
    def lds_spin(addr_v, off, want, tmpv, name, sleep=1):
        L = a.newlabel("spin_" + name); Ld = a.newlabel("spun_" + name)
        a("s_mov_b32 s58, 0")
        a.label(L)
        a("ds_read_b32 v%d, v%d offset:%d" % (tmpv, addr_v, off))
        a("s_waitcnt lgkmcnt(0)")
        a("v_readfirstlane_b32 s59, v%d" % tmpv)
        a("s_add_u32 s58, s58, 1")
        a("s_cmp_ge_u32 s58, %d" % spin_limit)
        a("s_cbranch_scc1 %s" % Ld)
        a("s_cmp_ge_u32 s59, %s" % want)
        a("s_cbranch_scc1 %s" % Ld)
        a("s_sleep %d" % sleep)
        a("s_branch %s" % L)
        a.label(Ld)
    def tagcheck(regs, tag_s, t0, t1, dst):
        if len(regs) == 2:
            a("v_xor_b32 v%d, s%d, v%d" % (t0, tag_s, regs[0]))
            a("v_xor_b32 v%d, s%d, v%d" % (t1, tag_s, regs[1]))
        else:
            a("v_max3_u32 v%d, v%d, v%d, v%d" % (t0, regs[0], regs[1], regs[2]))
            a("v_min3_u32 v%d, v%d, v%d, v%d" % (t1, regs[0], regs[1], regs[2]))
            rest = regs[3:]
            while len(rest) >= 2:
                a("v_max3_u32 v%d, v%d, v%d, v%d" % (t0, t0, rest[0], rest[1]))
                a("v_min3_u32 v%d, v%d, v%d, v%d" % (t1, t1, rest[0], rest[1]))
                rest = rest[2:]
            if rest:
                a("v_max_u32 v%d, v%d, v%d" % (t0, t0, rest[0]))
                a("v_min_u32 v%d, v%d, v%d" % (t1, t1, rest[0]))
            a("v_xor_b32 v%d, s%d, v%d" % (t0, tag_s, t0))
            a("v_xor_b32 v%d, s%d, v%d" % (t1, tag_s, t1))
        a("v_or_b32 v%d, v%d, v%d" % (t0, t0, t1))
        a("v_cmp_ne_u32 %s, 0, v%d" % (dst, t0))
    def mpoll(groups, tag_s, t0, t1, name, sleep=1, init_mask=None):
        L = a.newlabel("poll_" + name); Ld = a.newlabel("polled_" + name)
        ms = [(32 + 2 * k) for k in range(len(groups))]
        a("s_mov_b32 s58, 0")
        for m in ms:
            if init_mask is None:
                a("s_mov_b64 s[%d:%d], -1" % (m, m + 1))
            else:
                a("s_mov_b32 s%d, 0x%x" % (m, init_mask[0])); a("s_mov_b32 s%d, 0x%x" % (m + 1, init_mask[1]))
        a.label(L)
        for (loads, tags), m in zip(groups, ms):
            Ls = a.newlabel("skip")
            a("s_mov_b64 exec, s[%d:%d]" % (m, m + 1))
            a("s_cbranch_execz %s" % Ls)
            for ld in loads: a(ld)
            a.label(Ls)
        if init_mask is None:
            a.exec_all()
        else:
            a.exec_set(*init_mask)
        a("s_add_u32 s58, s58, 1")
        a("s_waitcnt vmcnt(0)")
        for (loads, tags), m in zip(groups, ms):
            tagcheck(tags, tag_s, t0, t1, "s[%d:%d]" % (m, m + 1))
        a("s_cmp_ge_u32 s58, %d" % (spin_limit >> 4))
        a("s_cbranch_scc1 %s" % Ld)
        a.nop(1)
        if len(ms) == 2:
            a("s_or_b64 s[36:37], s[32:33], s[34:35]")
        else:
            a("s_or_b64 s[36:37], s[32:33], s[32:33]")
        a("s_cbranch_scc0 %s" % Ld)
        if sleep: a("s_sleep %d" % sleep)
        a("s_branch %s" % L)
        a.label(Ld)
        a.exec_all()

    a("s_cmp_ge_u32 s2, 256")
    a("s_cbranch_scc1 L_end")
    stamp(0)
    a("s_load_dwordx2 s[28:29], s[0:1], 96")
    a("s_load_dwordx16 s[4:19], s[0:1], 0")
    a("s_load_dwordx8 s[20:27], s[0:1], 64")
    a("v_lshrrev_b32 v1, 6, v0")
    a("v_and_b32 v2, 63, v0")
    a("v_mov_b32 v3, 0")
    a("v_readfirstlane_b32 s3, v1")
    a("s_mov_b32 s56, 0x05040100")
    a("s_mov_b32 s57, 0x07060302")
    a("s_and_b32 s48, s2, 15")
    a("s_lshr_b32 s49, s2, 4")
    a("s_cmp_lt_u32 s3, 2")
    a("s_cbranch_scc1 L_service")

    a("v_subrev_u32 v4, 128, v0")
    a("v_lshlrev_b32 v4, 4, v4")
    a("v_mov_b32 v8, 0xff800000")
    a("v_cmp_gt_u32 vcc, 32, v4")
    a("s_mov_b32 s50, %d" % INIT_END)
    a("s_nop 0")
    a("v_cndmask_b32 v8, 0, v8, vcc")
    a("v_cmp_gt_u32 vcc, s50, v4")
    a("v_mov_b32 v9, v8")
    a("v_mov_b32 v10, v8")
    a("v_mov_b32 v11, v8")
    a("s_and_saveexec_b64 s[50:51], vcc")
    a("ds_write_b128 v4, v[8:11]")
    a("s_mov_b64 exec, s[50:51]")
    a("s_sub_u32 s54, s3, 2")
    a("s_sub_u32 s53, s3, 7")
    a("s_cmp_ge_u32 s3, 7")
    a("s_cselect_b32 s54, s53, s54")
    a("s_cselect_b32 s53, 1, 0")
    a("s_lshr_b32 s52, s54, 2")
    a("s_lshl_b32 s55, s48, 9")
    a("s_lshl_b32 s60, s54, 7")
    a("s_add_u32 s55, s55, s60")
    a("s_lshl_b32 s60, s48, 7")
    a("s_add_u32 s60, s60, 6144")
    a("s_cmp_eq_u32 s52, 1")
    a("s_cselect_b32 s55, s60, s55")
    a("s_lshl_b32 s60, s49, 13")
    a("s_add_u32 s55, s55, s60")
    a("s_lshl_b32 s60, s55, 8")
    for t in range(1, 8):
        a("s_add_u32 s%d, s60, %d" % (60 + t, 4096 * t))
    a("s_waitcnt lgkmcnt(0)")
    a.srd(40, 28, 29, 0x10000000)
    a("s_cmp_eq_u32 s53, 1")
    a("s_cbranch_scc1 L_vwave")

    a("s_cmp_eq_u32 s52, 1")
    a.srd_sel(32, 6, 16, 0x2000000)
    a("v_and_b32 v4, 3, v2")
    a("v_lshlrev_b32 v4, 2, v4")
    a("v_bfe_u32 v5, v2, 2, 2")
    a("v_add_u32 v4, v4, v5")
    a("v_lshlrev_b32 v4, 8, v4")
    a("v_lshrrev_b32 v5, 4, v2")
    a("v_lshl_add_u32 v4, v5, 4, v4")
    a("s_barrier")
    KR = 8
    for u in range(32):
        t, j = u // 4, u % 4
        r = KR + 4 * u
        if u == kpre:
            lds_spin(3, C_QP, "1", 1, "qp", sleep=1)
        a("buffer_load_dwordx4 v[%d:%d], v4, s[32:35], s%d offen offset:%d %s" % (r, r + 3, 60 + t, 64 * j, nt))
    a("s_mov_b64 exec, 1")
    a("v_mov_b32 v159, 1")
    a("ds_add_u32 v3, v159 offset:%d" % C_KI)
    a.exec_all()
    stamp(1)
    a("v_and_b32 v6, 3, v2")
    a("v_lshlrev_b32 v6, 8, v6")
    a("v_lshl_add_u32 v6, v5, 4, v6")
    a("s_lshl_b32 s68, s52, 10")
    a("v_add_u32 v6, s68, v6")
    a("s_lshl_b32 s69, s52, 2")
    a("v_mov_b32 v7, s69")
    lds_spin(7, C_QF, "1", 1, "q", sleep=2)
    stamp(2)
    QR = 136
    for j in range(4):
        a("ds_read_b128 v[%d:%d], v6 offset:%d" % (QR + 4 * j, QR + 4 * j + 3, QBUF + 64 * j))
    a("s_waitcnt lgkmcnt(0)")
    def SR(t): return 152 if t == 0 else KR + 16 * (t - 1)
    for t in range(8):
        a("s_waitcnt vmcnt(%d)" % (28 - 4 * t))
        for j in range(4):
            r = KR + t * 16 + j * 4
            c = "0" if j == 0 else "v[%d:%d]" % (SR(t), SR(t) + 3)
            a("v_mfma_f32_16x16x32_bf16 v[%d:%d], v[%d:%d], v[%d:%d], %s" % (SR(t), SR(t) + 3, r, r + 3, QR + 4 * j, QR + 4 * j + 3, c))
    stamp(3)
    a.nop(8)
    T0, T1 = 156, 157
    for t in range(8):
        for p in range(2):
            r = SR(t) + 2 * p
            a("v_cvt_pk_bf16_f32 v%d, v%d, v%d" % (T0, r, r + 1))
            a("v_lshlrev_b32 v%d, 16, v%d" % (r, T0))
            a("v_and_b32 v%d, 0xffff0000, v%d" % (r + 1, T0))
            a("v_mul_f32 v%d, 0x%x, v%d" % (r, SCALE, r))
            a("v_mul_f32 v%d, 0x%x, v%d" % (r + 1, SCALE, r + 1))
            a("v_cvt_pk_bf16_f32 v%d, v%d, v%d" % (T0, r, r + 1))
            a("v_lshlrev_b32 v%d, 16, v%d" % (r, T0))
            a("v_and_b32 v%d, 0xffff0000, v%d" % (r + 1, T0))
    allS = [SR(t) + r for t in range(8) for r in range(4)]
    a("v_max3_f32 v%d, v%d, v%d, v%d" % (T1, allS[0], allS[1], allS[2]))
    rest = allS[3:]
    while len(rest) >= 2:
        a("v_max3_f32 v%d, v%d, v%d, v%d" % (T1, T1, rest[0], rest[1])); rest = rest[2:]
    a("v_max_f32 v%d, v%d, v%d" % (T1, T1, rest[0]))
    a("v_and_b32 v158, 3, v2")
    a("v_lshlrev_b32 v158, 2, v158")
    a("s_lshl_b32 s68, s52, 4")
    a("v_add_u32 v158, s68, v158")
    a.exec_set(0x000F000F, 0x000F000F)
    a("ds_max_f32 v158, v%d offset:%d" % (T1, MX))
    a("s_mov_b64 exec, 1")
    a("ds_add_u32 v7, v159 offset:%d" % C_MC)
    a.exec_all()
    a("s_cmp_eq_u32 s52, 1")
    a("s_cselect_b32 s68, 1, 4")
    lds_spin(7, C_MC, "s68", 1, "mx", sleep=1)
    a("ds_read_b32 v%d, v158 offset:%d" % (T1, MX))
    a("s_mov_b32 s69, 0x%x" % LOG2E)
    a("s_waitcnt lgkmcnt(0)")
    a("v_mul_f32 v%d, s69, v%d" % (T1, T1))
    for r in allS:
        a("v_fma_f32 v%d, v%d, s69, -v%d" % (r, r, T1))
    for r in allS:
        a("v_exp_f32 v%d, v%d" % (r, r))
    a.nop(1)
    a("v_add_f32 v%d, v%d, v%d" % (T0, allS[0], allS[1]))
    a("v_add_f32 v%d, v%d, v%d" % (T1, allS[2], allS[3]))
    for k in range(4, 32, 2):
        a("v_add_f32 v%d, v%d, v%d" % (T0, T0, allS[k]))
        a("v_add_f32 v%d, v%d, v%d" % (T1, T1, allS[k + 1]))
    a("v_add_f32 v%d, v%d, v%d" % (T0, T0, T1))
    for b2 in range(4):
        for u in range(4):
            r = SR(2 * b2 + (u >> 1)) + 2 * (u & 1)
            a("v_cvt_pk_bf16_f32 v%d, v%d, v%d" % (QR + 4 * b2 + u, r, r + 1))
    a("v_and_b32 v6, 3, v2")
    a("v_lshl_add_u32 v6, v6, 2, v5")
    a("v_lshlrev_b32 v6, 4, v6")
    a("s_lshl_b32 s68, s54, 10")
    a("v_add_u32 v6, s68, v6")
    a.exec_set(0x000F000F, 0x000F000F)
    a("ds_add_f32 v158, v%d offset:%d" % (T0, LS))
    for b2 in range(4):
        a("ds_write_b128 v6, v[%d:%d] offset:%d" % (QR + 4 * b2, QR + 4 * b2 + 3, PBUF + 256 * b2))
    a("s_mov_b64 exec, 1")
    a("s_lshl_b32 s68, s54, 2")
    a("v_mov_b32 v6, s68")
    a("ds_write_b32 v6, v159 offset:%d" % C_PF)
    a.exec_all()
    stamp(4)
    a("s_branch L_fin")

    a.label("L_vwave")
    a("s_cmp_eq_u32 s52, 1")
    a.srd_sel(32, 8, 18, 0x2000000)
    a("v_lshlrev_b32 v4, 4, v2")
    a("s_barrier")
    a("s_load_dwordx2 s[30:31], s[28:29], 0x%x" % EPOCH_OFF)
    lds_spin(3, C_KI, "5", 1, "ki", sleep=1)
    VR = 8
    for u in range(32):
        r = VR + 4 * u
        a("buffer_load_dwordx4 v[%d:%d], v4, s[32:35], s%d offen offset:%d %s" % (r, r + 3, 60 + (u >> 2), 1024 * (u & 3), nt))
    stamp(1)
    a("v_lshrrev_b32 v1, 4, v2")
    a("v_and_b32 v0, 3, v2")
    a("v_lshl_add_u32 v0, v0, 2, v1")
    a("v_lshlrev_b32 v0, 4, v0")
    a("s_lshl_b32 s68, s54, 10")
    a("s_add_u32 s68, s68, %d" % PBUF)
    a("v_add_u32 v0, s68, v0")
    a("v_mov_b32 v1, %d" % ZERO)
    for gam in range(4):
        m = 0xF << (4 * gam); m = m | (m << 16)
        a("s_mov_b32 s70, 0x%x" % m)
        a("s_mov_b32 s71, 0x%x" % m)
        a("v_cndmask_b32 v%d, v1, v0, s[70:71]" % (4 + gam))
    a("s_lshl_b32 s68, s54, 2")
    a("v_mov_b32 v0, s68")
    a("s_cmp_eq_u32 s52, 1")
    a("s_cselect_b32 s70, s31, s30")
    a("s_cselect_b32 s71, 0, 3")
    a("s_add_u32 s70, s70, 0x%x" % TAGC)
    a("s_lshl_b32 s68, s52, 4")
    a("s_add_u32 s68, s68, s49")
    a("s_lshl_b32 s69, s68, 16")
    a("s_lshl_b32 s72, s48, 10")
    a("s_add_u32 s69, s69, s72")
    a("s_add_u32 s60, s69, 0x%x" % P2_OFF)
    for h in range(1, 4):
        a("s_add_u32 s%d, s60, %d" % (60 + h, h * 16384))
    a("s_lshl_b32 s69, s68, 10")
    a("s_lshl_b32 s72, s48, 4")
    a("s_add_u32 s69, s69, s72")
    a("s_add_u32 s64, s69, 0x%x" % ML_OFF)
    a("s_mov_b32 s69, 0x%x" % LOG2E)
    lds_spin(0, C_PF, "1", 1, "p")
    stamp(2)
    PA0 = 136; TT = 152; DD = 160
    def PA(b2): return PA0 if b2 == 0 else (VR + 16 * ((b2 - 1) & 1)) if b2 < 3 else VR + 32
    def readP(b2):
        for gam in range(4):
            r = PA(b2) + 4 * gam
            a("ds_read_b128 v[%d:%d], v%d offset:%d" % (r, r + 3, 4 + gam, 256 * b2))
    readP(0)
    for b2 in range(4):
        a("s_waitcnt vmcnt(%d) lgkmcnt(0)" % (24 - 8 * b2))
        if b2 == 3: stamp(3)
        k = 0
        for w in range(4):
            for e in range(2):
                T = TT + 4 * (k & 1)
                for u in range(4):
                    lo = VR + (8 * b2 + 2 * u) * 4 + w
                    hi = VR + (8 * b2 + 2 * u + 1) * 4 + w
                    a("v_perm_b32 v%d, v%d, v%d, s%d" % (T + u, hi, lo, 56 + e))
                a.nop(2)
                c = "0" if (b2 == 0 and w == 0) else "v[%d:%d]" % (DD + 4 * e, DD + 4 * e + 3)
                a("v_mfma_f32_16x16x32_bf16 v[%d:%d], v[%d:%d], v[%d:%d], %s" % (DD + 4 * e, DD + 4 * e + 3, PA(b2) + 4 * w, PA(b2) + 4 * w + 3, T, T + 3, c))
                k += 1
        if b2 == 0:
            readP(1); readP(2)
        if b2 == 1:
            readP(3)
        if b2 == 2:
            a("v_lshlrev_b32 v136, 4, v2")
            a("s_lshl_b32 s72, s54, 11")
            a("v_add_u32 v137, s72, v136")
            a("s_lshl_b32 s72, s52, 2")
            a("v_mov_b32 v138, s72")
            a("v_mov_b32 v139, 1")
            a("v_lshlrev_b32 v140, 2, v2")
            a("s_lshl_b32 s72, s52, 4")
            a("v_add_u32 v140, s72, v140")
            a("v_and_b32 v140, 31, v140")
            a("v_and_b32 v141, 15, v2")
            a("v_lshrrev_b32 v142, 4, v2")
            a("v_lshl_add_u32 v141, v141, 2, v142")
            a("v_lshlrev_b32 v141, 4, v141")
            a("v_lshlrev_b32 v142, 8, v2")
            for r in range(5):
                a("v_mov_b32 v%d, s70" % (72 + 4 * r + 1))
                a("v_mov_b32 v%d, s70" % (72 + 4 * r + 3))
    stamp(5)
    a("ds_read_b32 v88, v140 offset:%d" % MX)
    a("ds_read_b32 v90, v140 offset:%d" % LS)
    a("s_cmp_eq_u32 s52, 1")
    a("s_cbranch_scc1 L_vB")
    a.nop(4)
    a("ds_write_b128 v137, v[%d:%d] offset:%d" % (DD, DD + 3, OSL))
    a("ds_write_b128 v137, v[%d:%d] offset:%d" % (DD + 4, DD + 7, OSL + 1024))
    a("s_mov_b64 exec, 1")
    a("ds_add_rtn_u32 v143, v138, v139 offset:%d" % C_OT)
    a.exec_all()
    for sl in range(4):
        for hf in range(2):
            r = 8 + (sl * 2 + hf) * 4
            a("ds_read_b128 v[%d:%d], v136 offset:%d" % (r, r + 3, OSL + sl * 2048 + hf * 1024))
    a("ds_read_b32 v90, v140 offset:%d" % LS)
    a("s_waitcnt lgkmcnt(0)")
    stamp(6)
    a("v_readfirstlane_b32 s72, v143")
    for q in range(8):
        a("v_add_f32 v%d, v%d, v%d" % (8 + q, 8 + q, 16 + q))
        a("v_add_f32 v%d, v%d, v%d" % (24 + q, 24 + q, 32 + q))
    a("s_cmp_lg_u32 s72, s71")
    a("s_cbranch_scc1 L_fin")
    for r in range(4):
        for e in range(2):
            a("v_add_f32 v%d, v%d, v%d" % (72 + 4 * r + 2 * e, 8 + 4 * e + r, 24 + 4 * e + r))
    a("s_branch L_vpub")
    a.label("L_vB")
    a.nop(4)
    for r in range(4):
        for e in range(2):
            a("v_mov_b32 v%d, v%d" % (72 + 4 * r + 2 * e, DD + 4 * e + r))
    a("s_waitcnt lgkmcnt(0)")
    a.label("L_vpub")
    a("v_mul_f32 v88, s69, v88")
    for h in range(4):
        a("buffer_store_dwordx4 v[%d:%d], v141, s[40:43], s%d offen sc1" % (72 + 4 * h, 72 + 4 * h + 3, 60 + h))
    a("s_mov_b64 exec, 15")
    a("buffer_store_dwordx4 v[88:91], v142, s[40:43], s64 offen sc1")
    a("s_mov_b64 exec, 1")
    a("ds_write_b32 v138, v139 offset:%d" % C_PUB)
    a.exec_all()
    stamp(4)
    a("s_branch L_fin")

    a.label("L_service")
    a("s_lshr_b32 s52, s2, 7")
    a("s_bfe_u32 s53, s2, 0x10006")
    a("s_and_b32 s54, s2, 63")
    a("s_lshl_b32 s55, s53, 8")
    a("s_lshl_b32 s68, s3, 7")
    a("s_add_u32 s55, s55, s68")
    a("s_lshl_b32 s68, s55, 13")
    a("s_lshl_b32 s69, s54, 7")
    a("s_add_u32 s60, s68, s69")
    WS = list(range(60, 76))
    for u in range(1, 16):
        blk, i = u // 8, u % 8
        a("s_add_u32 s%d, s60, %d" % (WS[u], (64 * blk + i) * 8192))
    a("v_and_b32 v4, 7, v2")
    a("v_lshlrev_b32 v4, 4, v4")
    a("v_bfe_u32 v5, v2, 3, 1")
    a("v_lshl_add_u32 v4, v5, 18, v4")
    a("v_lshrrev_b32 v6, 4, v2")
    a("v_lshl_add_u32 v4, v6, 16, v4")
    a("v_and_b32 v7, 1, v2")
    a("v_lshlrev_b32 v7, 10, v7")
    a("v_lshl_add_u32 v7, v5, 6, v7")
    a("v_lshl_add_u32 v7, v6, 4, v7")
    a("s_lshl_b32 s59, s55, 1")
    a("s_cmp_eq_u32 s52, 1")
    a("s_waitcnt lgkmcnt(0)")
    a.srd_sel(32, 10, 20, 0x400000)
    a.srd_sel(44, 4, 14, 2048)
    XR = 136
    a("buffer_load_dwordx4 v[%d:%d], v7, s[44:47], s59 offen" % (XR, XR + 3))
    a("buffer_load_dwordx4 v[%d:%d], v7, s[44:47], s59 offen offset:128" % (XR + 4, XR + 7))
    WR = 8
    for u in range(16):
        r = WR + 4 * u
        a("buffer_load_dwordx4 v[%d:%d], v4, s[32:35], s%d offen %s" % (r, r + 3, WS[u], nt))
    a("s_cmp_eq_u32 s52, 1")
    a.srd_sel(36, 12, 22, 0x400000)
    a.srd(40, 28, 29, 0x10000000)
    a("s_and_b32 s50, s2, 127")
    a("s_mov_b32 s51, s3")
    a("s_lshl_b32 s60, s50, 15")
    a("s_lshl_b32 s61, s51, 9")
    a("s_add_u32 s60, s60, s61")
    for u in range(1, 4):
        a("s_add_u32 s%d, s60, %d" % (60 + u, 8192 * u))
    a("v_and_b32 v5, 15, v2")
    a("v_lshlrev_b32 v5, 4, v5")
    a("v_lshl_add_u32 v5, v6, 11, v5")
    a("s_barrier")
    WO = 72
    for blk in range(2):
        for i in range(8):
            r = WO + (blk * 8 + i) * 4
            a("buffer_load_dwordx4 v[%d:%d], v5, s[36:39], s%d offen offset:%d %s" % (r, r + 3, 60 + (i >> 1), (i & 1) * 1024 + blk * 256, nt))
    stamp(1)
    a("s_load_dwordx2 s[30:31], s[28:29], 0x%x" % EPOCH_OFF)
    NW = 0
    if warm:
        a("v_lshlrev_b32 v5, 20, v2")
        a("s_mov_b64 exec, 0x7f")
        a("buffer_load_dword v1, v5, s[40:43], 0 offen offset:2048")
        a.exec_all()
        NW = 1
    TT = 152; DD = 160; XA = 144
    for gam in range(4):
        m = (3 << (2 * gam)) * 0x01010101
        a("s_mov_b32 s%d, 0x%x" % (64 + 2 * gam, m))
        a("s_mov_b32 s%d, 0x%x" % (65 + 2 * gam, m))
    a("v_and_b32 v4, 7, v2")
    a("v_lshlrev_b32 v4, 5, v4")
    a("v_and_b32 v5, 1, v6")
    a("v_lshl_add_u32 v4, v5, 4, v4")
    a("v_lshrrev_b32 v5, 5, v2")
    a("v_lshl_add_u32 v4, v5, 9, v4")
    a("s_lshl_b32 s72, s3, 10")
    a("v_add_u32 v4, s72, v4")
    for blk in range(2):
        a("s_waitcnt vmcnt(%d)" % (24 + NW - 8 * blk))
        k = 0
        for w in range(4):
            A = XA + 4 * (w & 1)
            for u in range(4):
                a("v_cndmask_b32 v%d, 0, v%d, s[%d:%d]" % (A + u, XR + 4 * blk + u, 64 + 2 * w, 65 + 2 * w))
            for e in range(2):
                T = TT + 4 * (k & 1)
                for u in range(4):
                    lo = WR + (8 * blk + 2 * u) * 4 + w
                    hi = WR + (8 * blk + 2 * u + 1) * 4 + w
                    a("v_perm_b32 v%d, v%d, v%d, s%d" % (T + u, hi, lo, 56 + e))
                a.nop(2)
                c = "0" if (blk == 0 and w == 0) else "v[%d:%d]" % (DD + 4 * e, DD + 4 * e + 3)
                a("v_mfma_f32_16x16x32_bf16 v[%d:%d], v[%d:%d], v[%d:%d], %s" % (DD + 4 * e, DD + 4 * e + 3, A, A + 3, T, T + 3, c))
                k += 1
    stamp(2)
    a("v_mov_b32 v5, 1")
    a("v_lshlrev_b32 v7, 3, v2")
    a("v_and_b32 v12, 31, v2")
    a("v_lshlrev_b32 v12, 4, v12")
    a("v_lshrrev_b32 v13, 5, v2")
    a("v_lshl_add_u32 v12, v13, 16, v12")
    a("s_lshl_b32 s62, s52, 17")
    a("s_lshl_b32 s63, s53, 15")
    a("s_add_u32 s62, s62, s63")
    a("s_lshl_b32 s63, s54, 9")
    a("s_add_u32 s62, s62, s63")
    a("s_add_u32 s62, s62, 0x%x" % Q1_OFF)
    for b in range(2):
        a("v_mov_b32 v%d, v%d" % (16 + 4 * b + 0, DD + b))
        a("v_mov_b32 v%d, v%d" % (16 + 4 * b + 1, DD + 4 + b))
        a("v_mov_b32 v%d, v%d" % (16 + 4 * b + 2, DD + 2 + b))
        a("v_mov_b32 v%d, v%d" % (16 + 4 * b + 3, DD + 4 + 2 + b))
    a.exec_set(0x00FF00FF, 0xFF00FF00)
    a("ds_write_b128 v4, v[16:19] offset:%d" % QSL)
    a("ds_write_b128 v4, v[20:23] offset:%d" % (QSL + 256))
    a("s_mov_b64 exec, 1")
    a("ds_add_rtn_u32 v14, v3, v5 offset:%d" % C_QT)
    a.exec_all()
    for k in range(4):
        a("ds_read_b64 v[%d:%d], v7 offset:%d" % (24 + 2 * k, 25 + 2 * k, QSL + 512 * k))
    a("s_waitcnt lgkmcnt(0)")
    a("s_add_u32 s30, s30, 0x%x" % TAGC)
    a("s_add_u32 s31, s31, 0x%x" % TAGC)
    a("s_cmp_eq_u32 s52, 1")
    a("s_cselect_b32 s60, s31, s30")
    a("v_readfirstlane_b32 s61, v14")
    a("v_add_f32 v8, v24, v26")
    a("v_add_f32 v10, v25, v27")
    a("v_add_f32 v24, v28, v30")
    a("v_add_f32 v25, v29, v31")
    a("v_mov_b32 v9, s60")
    a("v_mov_b32 v11, s60")
    a("v_add_f32 v8, v8, v24")
    a("v_add_f32 v10, v10, v25")
    a("s_cmp_lg_u32 s61, 1")
    a("s_cbranch_scc1 L_noqpub")
    a("buffer_store_dwordx4 v[8:11], v12, s[40:43], s62 offen sc1")
    a("ds_write_b32 v3, v5 offset:%d" % C_QP)
    a.label("L_noqpub")
    stamp(3)
    a("s_mov_b32 s52, s50")
    a("s_mov_b32 s53, s51")
    a("s_cmp_eq_u32 s3, 1")
    a("s_cselect_b32 s50, s31, s30")
    a("s_lshr_b32 s60, s49, 3")
    a("s_and_b32 s61, s49, 7")
    a("s_lshl_b32 s62, s3, 1")
    a("s_add_u32 s62, s62, s60")
    a("s_lshl_b32 s62, s62, 16")
    a("s_lshl_b32 s61, s61, 12")
    a("s_add_u32 s62, s62, s61")
    a("s_add_u32 s62, s62, 0x%x" % Q1_OFF)
    a("s_add_u32 s63, s62, 32768")
    PR = 16
    if sentinel:
        a("v_and_b32 v4, 7, v2")
        a("v_lshlrev_b32 v4, 9, v4")
        a("v_bfe_u32 v5, v2, 3, 1")
        a("v_lshl_add_u32 v4, v5, 15, v4")
        mpoll([(["buffer_load_dwordx4 v[%d:%d], v4, s[40:43], s62 offen sc1" % (PR, PR + 3)], [PR + 1, PR + 3])], 50, 5, 6, "qs", sleep=4, init_mask=(0xffff, 0))
    a("v_lshlrev_b32 v4, 4, v2")
    groups = []
    for kap in range(2):
        loads = []; tags = []
        for u in range(4):
            r = PR + (kap * 4 + u) * 4
            loads.append("buffer_load_dwordx4 v[%d:%d], v4, s[40:43], s%d offen offset:%d sc1" % (r, r + 3, 62 + kap, 1024 * u))
            tags += [r + 1, r + 3]
        groups.append((loads, tags))
    mpoll(groups, 50, 5, 6, "q", sleep=4)
    a("v_lshlrev_b32 v4, 2, v2")
    a("s_lshl_b32 s60, s3, 10")
    a("v_add_u32 v4, s60, v4")
    for u in range(4):
        r0 = PR + u * 4; r1 = PR + (4 + u) * 4
        a("v_add_f32 v%d, v%d, v%d" % (r0, r0, r1))
        a("v_add_f32 v%d, v%d, v%d" % (r0 + 2, r0 + 2, r1 + 2))
        a("v_cvt_pk_bf16_f32 v%d, v%d, v%d" % (r0, r0, r0 + 2))
        a("ds_write_b32 v4, v%d offset:%d" % (r0, QBUF + 256 * u))
    a("s_lshl_b32 s60, s3, 2")
    a("v_mov_b32 v7, s60")
    a("v_mov_b32 v5, 1")
    a("ds_write_b32 v7, v5 offset:%d" % C_QF)
    stamp(4)
    a("s_lshr_b32 s55, s2, 7")
    a("s_cmp_eq_u32 s55, 1")
    a("s_cselect_b32 s50, s31, s30")
    a("s_lshl_b32 s60, s55, 2")
    a("v_mov_b32 v7, s60")
    a("v_and_b32 v4, 15, v2")
    a("v_lshrrev_b32 v6, 4, v2")
    a("v_bfe_u32 v140, v2, 1, 1")
    a("v_and_b32 v141, 1, v2")
    a("v_bfe_u32 v142, v2, 2, 2")
    a("v_lshl_add_u32 v141, v142, 1, v141")
    a("v_lshlrev_b32 v136, 19, v140")
    a("v_lshl_add_u32 v136, v141, 11, v136")
    a("v_lshl_add_u32 v136, v6, 4, v136")
    a("v_lshlrev_b32 v137, 13, v140")
    a("v_lshl_add_u32 v137, v141, 5, v137")
    a("s_lshr_b32 s64, s52, 2")
    a("s_and_b32 s65, s52, 3")
    a("s_lshl_b32 s66, s55, 20")
    a("s_lshl_b32 s67, s64, 14")
    a("s_add_u32 s66, s66, s67")
    a("s_lshl_b32 s67, s65, 8")
    a("s_add_u32 s66, s66, s67")
    a("s_add_u32 s66, s66, 0x%x" % P2_OFF)
    a("s_lshl_b32 s67, s55, 14")
    a("s_lshl_b32 s68, s64, 8")
    a("s_add_u32 s67, s67, s68")
    a("s_add_u32 s67, s67, 0x%x" % ML_OFF)
    a("s_mul_i32 s68, s55, %d" % FSZ)
    a("s_mul_i32 s69, s52, %d" % FSTRIDE)
    a("s_add_u32 s69, s69, s68")
    a("s_lshl_b32 s70, s53, 12")
    a("s_add_u32 s69, s69, s70")
    a("s_add_u32 s69, s69, 0x%x" % F_OFF)
    a("v_lshlrev_b32 v138, 4, v4")
    a("s_bfe_u32 s74, s2, 0x30004")
    a("s_lshl_b32 s74, s74, 3")
    a("s_and_b32 s75, s2, 7")
    a("s_add_u32 s74, s74, s75")
    a("s_lshl_b32 s74, s74, 1")
    a("s_bfe_u32 s75, s2, 0x10003")
    a("s_add_u32 s74, s74, s75")
    a("s_lshl_b32 s74, s74, 1")
    a("s_add_u32 s74, s74, s3")
    a("s_lshl_b32 s70, s74, 5")
    a("s_add_u32 s70, s70, s68")
    a("s_add_u32 s70, s70, 0x%x" % F_OFF)
    a("s_add_u32 s71, s70, %d" % (64 * FSTRIDE))
    a("s_mov_b32 s72, %d" % FSTRIDE)
    a("v_mul_lo_u32 v139, s72, v2")
    a("s_lshr_b32 s72, s74, 6")
    a("s_lshl_b32 s72, s72, 7")
    a("s_and_b32 s73, s74, 7")
    a("s_lshl_b32 s73, s73, 4")
    a("s_add_u32 s72, s72, s73")
    a("s_bfe_u32 s73, s74, 0x30003")
    a("s_add_u32 s72, s72, s73")
    a("s_lshl_b32 s73, s55, 9")
    a("s_add_u32 s72, s72, s73")
    a("s_lshl_b32 s72, s72, 1")
    a("v_and_b32 v140, 1, v6")
    a("v_lshlrev_b32 v140, 11, v140")
    a("v_lshrrev_b32 v141, 1, v6")
    a("v_lshl_add_u32 v140, v141, 4, v140")
    a.srd(44, 24, 25, 4096)
    WB = 8
    a("s_waitcnt lgkmcnt(0)")
    for blk in range(2):
        for w in range(4):
            for e in range(2):
                T = WB + (blk * 8 + 2 * w + e) * 4
                for u in range(4):
                    lo = WO + (8 * blk + 2 * u) * 4 + w
                    hi = WO + (8 * blk + 2 * u + 1) * 4 + w
                    a("v_perm_b32 v%d, v%d, v%d, s%d" % (T + u, hi, lo, 56 + e))
    stamp(5)
    lds_spin(7, C_PUB, "1", 1, "pub", sleep=2)
    stamp(6)
    PR = 72
    L = a.newlabel("h2poll"); Ld = a.newlabel("h2done")
    a("s_mov_b32 s58, 0")
    for m in (32, 34, 36, 38):
        a("s_mov_b64 s[%d:%d], -1" % (m, m + 1))
    a("s_xor_b32 s59, s50, 1")
    a("v_mov_b32 v%d, s59" % (PR + 1))
    a("v_mov_b32 v%d, s59" % (PR + 17))
    a("s_mov_b64 s[60:61], 0")
    a("s_mov_b64 s[62:63], 0")
    a.label(L)
    for sl in range(2):
        Ls = a.newlabel("skip")
        r = PR + 32 + 4 * sl
        a("s_mov_b64 exec, s[%d:%d]" % (32 + 2 * sl, 33 + 2 * sl))
        a("s_cbranch_execz %s" % Ls)
        a("buffer_load_dwordx4 v[%d:%d], v137, s[40:43], s67 offen offset:%d sc1" % (r, r + 3, 16 * sl))
        a.label(Ls)
    for sl in range(2):
        Ls = a.newlabel("skip")
        a("s_mov_b64 exec, s[%d:%d]" % (60 + 2 * sl, 61 + 2 * sl))
        a("s_cbranch_execz %s" % Ls)
        for u in range(4):
            r = PR + (sl * 4 + u) * 4
            a("buffer_load_dwordx4 v[%d:%d], v136, s[40:43], s66 offen offset:%d sc1" % (r, r + 3, 1024 * sl + 64 * u))
        a.label(Ls)
    a.exec_all()
    a("s_add_u32 s58, s58, 1")
    a("s_waitcnt vmcnt(0)")
    for sl in range(2):
        r = PR + 32 + 4 * sl
        tagcheck([r + 1, r + 3], 50, 5, 4, "s[%d:%d]" % (32 + 2 * sl, 33 + 2 * sl))
    for sl in range(2):
        tags = []
        for u in range(4):
            r = PR + (sl * 4 + u) * 4
            tags += [r + 1, r + 3]
        tagcheck(tags, 50, 5, 4, "s[%d:%d]" % (36 + 2 * sl, 37 + 2 * sl))
    a("s_cmp_ge_u32 s58, %d" % (spin_limit >> 4))
    a("s_cbranch_scc1 %s" % Ld)
    a("s_or_b64 s[60:61], s[32:33], s[34:35]")
    a("s_or_b64 s[62:63], s[36:37], s[38:39]")
    a("s_or_b64 s[60:61], s[60:61], s[62:63]")
    a("s_cbranch_scc0 %s" % Ld)
    a("s_bcnt1_i32_b64 s59, s[32:33]")
    a("s_bcnt1_i32_b64 s60, s[34:35]")
    a("s_add_u32 s59, s59, s60")
    a("s_andn2_b64 s[60:61], s[36:37], s[32:33]")
    a("s_andn2_b64 s[62:63], s[38:39], s[34:35]")
    a("s_cmp_le_u32 s59, %d" % few)
    a("s_cselect_b64 s[60:61], s[36:37], s[60:61]")
    a("s_cselect_b64 s[62:63], s[38:39], s[62:63]")
    a("s_cbranch_scc1 %s" % L)
    if h2sleep: a("s_sleep %d" % h2sleep)
    a("s_branch %s" % L)
    a.label(Ld)
    stamp(7)
    M0, L0, M1, L1 = PR + 32, PR + 34, PR + 36, PR + 38
    X = 114
    def dpp3(op, r):
        a.nop(2)
        a("%s_dpp v%d, v%d, v%d quad_perm:[1,0,3,2] row_mask:0xf bank_mask:0xf" % (op, r, r, r))
        a.nop(2)
        a("%s_dpp v%d, v%d, v%d row_ror:4 row_mask:0xf bank_mask:0xf" % (op, r, r, r))
        a.nop(2)
        a("%s_dpp v%d, v%d, v%d row_ror:8 row_mask:0xf bank_mask:0xf" % (op, r, r, r))
    a("v_max_f32 v%d, v%d, v%d" % (X, M0, M1))
    dpp3("v_max_f32", X)
    a("v_sub_f32 v%d, v%d, v%d" % (M0, M0, X))
    a("v_sub_f32 v%d, v%d, v%d" % (M1, M1, X))
    a("v_exp_f32 v%d, v%d" % (M0, M0))
    a("v_exp_f32 v%d, v%d" % (M1, M1))
    a.nop(1)
    a("v_mul_f32 v%d, v%d, v%d" % (X, M0, L0))
    a("v_fmac_f32 v%d, v%d, v%d" % (X, M1, L1))
    vals = []
    for u in range(4):
        for e in range(2):
            r0 = PR + u * 4 + 2 * e; r1 = PR + (4 + u) * 4 + 2 * e
            a("v_mul_f32 v%d, v%d, v%d" % (r0, M0, r0))
            a("v_fmac_f32 v%d, v%d, v%d" % (r0, M1, r1))
            vals.append(r0)
    vals = [X] + vals
    for ctrl in ("quad_perm:[1,0,3,2]", "row_ror:4", "row_ror:8"):
        for r in vals:
            a("v_add_f32_dpp v%d, v%d, v%d %s row_mask:0xf bank_mask:0xf" % (r, r, r, ctrl))
            if ctrl == "row_ror:8" and r == X:
                a("v_rcp_f32 v%d, v%d" % (X, X))
    vals = vals[1:]
    for r in vals:
        a("v_mul_f32 v%d, v%d, v%d" % (r, X, r))
    AO = 116
    for u in range(4):
        a("v_cvt_pk_bf16_f32 v%d, v%d, v%d" % (AO + u, vals[2 * u], vals[2 * u + 1]))
    a.nop(2)
    Dq = [72, 76, 80, 84, 88, 92, 96, 100, 104, 108, 144, 148, 152, 156, 160, 164]
    def fin(k):
        d = Dq[k]; blk, jp = k // 8, k % 8
        a("v_mov_b32 v%d, s50" % (d + 1))
        a("v_mov_b32 v%d, s50" % (d + 3))
        a("s_mov_b64 exec, s[34:35]")
        a("buffer_store_dwordx4 v[%d:%d], v138, s[40:43], s69 offen offset:%d sc1" % (d, d + 3, blk * 2048 + jp * 256))
        a("s_mov_b64 exec, -1")
    a("s_mov_b32 s34, 0xffff")
    a("s_mov_b32 s35, 0")
    LAG = 3
    for k in range(16):
        d = Dq[k]; B = WB + 4 * k
        a("v_mfma_f32_16x16x32_bf16 v[%d:%d], v[%d:%d], v[%d:%d], 0" % (d, d + 3, AO, AO + 3, B, B + 3))
        if k == LAG - 1: a.nop(6)
        if k >= LAG: fin(k - LAG)
    for k in range(16 - LAG, 16):
        if k == 15: a.nop(1)
        fin(k)
    stamp(8)
    PR = 8
    groups = []
    for hf in range(2):
        loads = []; tags = []
        for e in range(2):
            r = PR + (hf * 2 + e) * 4
            loads.append("buffer_load_dwordx4 v[%d:%d], v139, s[40:43], s%d offen offset:%d sc1" % (r, r + 3, 70 + hf, 16 * e))
            tags += [r + 1, r + 3]
        groups.append((loads, tags))
    mpoll(groups, 50, 5, 4, "h3", sleep=psleep)
    stamp(9)
    for k in (0, 2, 4, 6):
        a("v_add_f32 v%d, v%d, v%d" % (PR + k, PR + k, PR + 8 + k))
    a.nop(2)
    a("v_permlane32_swap_b32 v%d, v%d" % (PR + 0, PR + 4))
    a("v_permlane32_swap_b32 v%d, v%d" % (PR + 2, PR + 6))
    a.nop(2)
    a("v_add_f32 v%d, v%d, v%d" % (PR + 0, PR + 0, PR + 4))
    a("v_add_f32 v%d, v%d, v%d" % (PR + 2, PR + 2, PR + 6))
    a.nop(2)
    a("v_permlane16_swap_b32 v%d, v%d" % (PR + 0, PR + 2))
    a.nop(2)
    a("v_add_f32 v%d, v%d, v%d" % (PR, PR, PR + 2))
    for sh in (8, 4, 2, 1):
        a.nop(2)
        a("v_add_f32_dpp v%d, v%d, v%d row_ror:%d row_mask:0xf bank_mask:0xf" % (PR, PR, PR, sh))
    a("v_cvt_pk_bf16_f32 v%d, v%d, v%d" % (PR, PR, PR))
    a.exec_set(0x00010001, 0x00010001)
    a("buffer_store_short v%d, v140, s[44:47], s72 offen" % PR)
    a("s_and_b32 s60, s2, 127")
    a("s_or_b32 s60, s60, s3")
    a("s_cmp_lg_u32 s60, 0")
    a("s_cbranch_scc1 L_noep")
    a("s_mov_b64 exec, 1")
    a("v_mov_b32 v5, s50")
    a("buffer_store_dword v5, v7, s[40:43], 0 offen offset:%d" % EPOCH_OFF)
    if dbg:
        a("s_memrealtime s[78:79]")
        a.srd(44, 26, 27, 256)
        a("s_waitcnt lgkmcnt(0)")
        a("s_sub_u32 s78, s78, s76")
        a("v_mov_b32 v5, s78")
        a("buffer_store_dword v5, v7, s[44:47], 0 offen")
    a.label("L_noep")
    a.exec_all()
    stamp(10)

    a.label("L_fin")
    if stamps:
        a("s_waitcnt vmcnt(0) lgkmcnt(0)")
        a("s_memrealtime s[98:99]")
        a("s_lshl_b32 s52, s2, 4")
        a("s_add_u32 s52, s52, s3")
        a("s_lshl_b32 s52, s52, 7")
        a("s_add_u32 s52, s52, 0x8000000")
        a("s_waitcnt lgkmcnt(0)")
        a("v_mov_b32 v1, 0")
        for k in range(24):
            a("v_mov_b32 v%d, s%d" % (8 + k, 76 + k))
        a("s_mov_b64 exec, 1")
        for k in range(6):
            a("buffer_store_dwordx4 v[%d:%d], v1, s[40:43], s52 offen offset:%d" % (8 + 4 * k, 11 + 4 * k, 16 * k))
    a.label("L_end")
    a("s_endpgm")
    return wrap(a.text(), 256, 768, LDS_BYTES, 168)

if __name__ == "__main__":
    open("k3.s", "w").write(gen("nt"))
    open("k3_dbg.s", "w").write(gen("nt", dbg=True))
    open("k3_def_dbg.s", "w").write(gen("", dbg=True))
    open("k3_st.s", "w").write(gen("nt", stamps=True))
    open("k3_nosent_st.s", "w").write(gen("nt", stamps=True, sentinel=False))
    open("k3_nowarm_st.s", "w").write(gen("nt", stamps=True, warm=False))
    open("k3_ps2_st.s", "w").write(gen("nt", stamps=True, psleep=2))
```
